```python
import torch

def _softmax(x, axis=-1):
    return torch.softmax(x, dim=axis)
def _gelu(x):
    return torch.nn.functional.gelu(x, approximate="tanh")
def _silu(x):
    return torch.nn.functional.silu(x)
def _sigmoid(x):
    return torch.sigmoid(x)
def _layernorm(x, axis=-1, eps=1e-5):
    m = x.mean(dim=axis, keepdim=True)
    v = x.var(dim=axis, keepdim=True, unbiased=False)
    return (x - m) / torch.sqrt(v + eps)
def _scatter_add(tgt, idx, src, axis=0):
    return tgt.clone().index_add_(axis, idx, src)
def _segment_sum(src, seg, n):
    out = torch.zeros((n,) + src.shape[1:], dtype=src.dtype)
    return out.index_add_(0, seg, src)
def _pad(x, pw):
    flat = tuple(v for pair in reversed(pw) for v in pair)
    return torch.nn.functional.pad(x, flat)

kernel_name = 'gated_mix__linear_attn_block__glu_gated_reglu__prompt'

def setup_inputs():

    _w = (lambda a: (lambda t: t.to(torch.bfloat16) if t.is_floating_point() else t)(torch.as_tensor(a)))
    def _A_setup():
        B, S, D = 1, 2048, 512
        return {
            "x": _w((lambda *s: torch.randn(*s, dtype=torch.bfloat16) * 0.05)(B, S, D)),
            "wqkv": _w((lambda *s: torch.randn(*s, dtype=torch.bfloat16) * 0.8)(D, 3 * D)),
            "wo": _w((lambda *s: torch.randn(*s, dtype=torch.bfloat16) * 0.05)(D, D)),
        }
    _A_in = _A_setup()

    def _B_setup():
        B, S, D, F = 1, 2048, 512, 1792
        return {
            "x": _w((lambda *s: torch.randn(*s, dtype=torch.bfloat16) * 0.05)(B, S, D)),
            "W_gate": _w((lambda *s: torch.randn(*s, dtype=torch.bfloat16) * 1.6)(D, F) * (2.0 / D) ** 0.5),
            "W_up": _w((lambda *s: torch.randn(*s, dtype=torch.bfloat16) * 1.6)(D, F) * (2.0 / D) ** 0.5),
            "W_down": _w((lambda *s: torch.randn(*s, dtype=torch.bfloat16) * 1.6)(F, D) * (1.0 / F) ** 0.5),
        }
    _B_in = _B_setup()

    return {
        "A_x": _A_in["x"],
        "A_wqkv": _A_in["wqkv"],
        "A_wo": _A_in["wo"],
        "B_x": _B_in["x"],
        "B_W_gate": _B_in["W_gate"],
        "B_W_up": _B_in["W_up"],
        "B_W_down": _B_in["W_down"],
        "gate_w": _w((lambda *s: torch.randn(*s, dtype=torch.bfloat16) * 0.05)(512) * 16.0),
    }

def reference(A_x, A_wqkv, A_wo, B_x, B_W_gate, B_W_up, B_W_down, gate_w):
    def _A_ref(x, wqkv, wo):
        B, S, D = x.shape
        H = 32; Dh = D // H
        qkv = (lambda x, *d: x.permute(*d))((x @ wqkv).reshape(B, S, 3, H, Dh), 2, 0, 3, 1, 4)
        q, k, v = qkv[0], qkv[1], qkv[2]
        phi = lambda t: torch.where(t > 0, t + 1, torch.exp(t)) + 1e-6
        pq, pk = phi(q), phi(k)
        kv = torch.einsum("bhsd,bhse->bhde", pk, v)
        z = torch.einsum("bhsd->bhd", pk)
        num = torch.einsum("bhqd,bhde->bhqe", pq, kv)
        den = torch.einsum("bhqd,bhd->bhq", pq, z)[..., None] + 1e-6
        o = num / den
        return (lambda x, *d: x.permute(*d))(o, 0, 2, 1, 3).reshape(B, S, D) @ wo

    def _B_ref(x, W_gate, W_up, W_down):
        gate = torch.einsum("bsd,df->bsf", x, W_gate)
        up = torch.einsum("bsd,df->bsf", x, W_up)
        gate = gate * (lambda x, dt: x.to(dt))(gate > 0, gate.dtype)
        h = gate * up
        return torch.einsum("bsf,fd->bsd", h, W_down)

    x = A_x
    g = _sigmoid((x * gate_w).sum(-1, keepdims=True))
    a = _A_ref(x, A_wqkv, A_wo)
    b = _B_ref(x, B_W_gate, B_W_up, B_W_down)
    return g * a + (1 - g) * b
```

```python
import re

_R1 = re.compile(r'^(-|\|)?([vas])(\d+)\|?$')
_R2 = re.compile(r'^([vas])\[(\d+):(\d+)\]$')


def regs(tok):
    tok = tok.strip()
    m = _R1.match(tok)
    if m:
        return {m.group(2) + m.group(3)}
    m = _R2.match(tok)
    if m:
        return {m.group(1) + str(i) for i in range(int(m.group(2)), int(m.group(3)) + 1)}
    if tok in ('vcc', 'vcc_lo', 'vcc_hi'):
        return {'vcc'}
    if tok == 'm0':
        return {'m0'}
    if tok in ('exec', 'exec_lo', 'exec_hi'):
        return {'exec'}
    return set()


def vr(base, n=1, f='v'):
    return f'{f}{base}' if n == 1 else f'{f}[{base}:{base + n - 1}]'


def ar(base, n=1):
    return vr(base, n, 'a')


def sr(base, n=1):
    return vr(base, n, 's')


TRANS = ('v_exp_f32', 'v_log_f32', 'v_rcp_f32', 'v_rsq_f32', 'v_sqrt_f32')


class I:
    __slots__ = ('text', 'kind', 'rd', 'wr', 'cost', 'vmwait', 'lgwait', 'fill', 'over', 'srcc', 'srcab', 'wide', 'note')

    def __init__(self, text, kind=None, rd=None, wr=None):
        self.text = text
        self.vmwait = []
        self.lgwait = []
        self.fill = None
        self.over = None
        self.srcc = set()
        self.srcab = set()
        self.wide = False
        self.note = None
        if kind is not None:
            self.kind = kind
            self.rd = set(rd or ())
            self.wr = set(wr or ())
            self.cost = 0 if kind in ('need', 'label', 'comment') else 4
            return
        mn, _, rest = text.partition(' ')
        ops = [o.strip() for o in rest.split(',')] if rest else []
        last_extra = []
        if ops:
            parts = ops[-1].split()
            ops[-1] = parts[0]
            last_extra = parts[1:]
        R = [regs(o) for o in ops]
        allr = set().union(*R) if R else set()
        tail = set().union(*R[1:]) if len(R) > 1 else set()
        self.cost = 4
        if mn.startswith('v_mfma'):
            self.kind = 'mfma'
            self.wr = R[0]
            self.srcab = R[1] | R[2]
            self.srcc = R[3]
            self.rd = tail
            self.cost = 8
        elif mn.startswith('v_permlane'):
            self.kind = 'perm'
            self.wr = allr
            self.rd = allr
        elif mn.startswith('v_readfirstlane') or mn.startswith('v_readlane'):
            self.kind = 'rdlane'
            self.wr = R[0]
            self.rd = tail
        elif mn.startswith('v_'):
            self.kind = 'valu'
            if mn.replace('_e32', '').replace('_e64', '') in TRANS:
                self.kind = 'trans'
                self.cost = 8
            if '_dpp' in mn:
                self.kind = 'dpp'
            if mn.startswith('v_dot2'):
                self.kind = 'dot'
            self.wr = set(R[0])
            self.rd = set(tail)
            if mn.startswith(('v_fmac', 'v_dot2c', 'v_writelane')) or '_dpp' in mn:
                self.rd |= R[0]
            if mn.startswith('v_swap'):
                self.wr = allr
                self.rd = allr
        elif mn.startswith('ds_read'):
            self.kind = 'dsr'
            self.wr = R[0]
            self.rd = tail
        elif mn.startswith('ds_'):
            self.kind = 'dsw'
            self.wr = set()
            self.rd = allr
        elif mn.startswith('buffer_load'):
            if 'lds' in last_extra:
                self.kind = 'dma'
                self.wr = set()
                self.rd = allr | {'m0'}
            else:
                self.kind = 'vml'
                self.wr = R[0]
                self.rd = tail
        elif mn.startswith('buffer_store') or mn.startswith('buffer_atomic'):
            self.kind = 'vms'
            self.wr = set()
            self.rd = allr
            self.wide = mn.endswith(('x3', 'x4'))
            self.srcab = R[0]
        elif mn == 's_barrier':
            self.kind = 'bar'
            self.rd = set()
            self.wr = set()
        elif mn.startswith('s_cbranch') or mn == 's_branch':
            self.kind = 'branch'
            self.rd = set()
            self.wr = set()
        elif mn.startswith('s_cmp') or mn.startswith('s_bitcmp'):
            self.kind = 'salu'
            self.rd = allr
            self.wr = {'scc'}
        elif mn in ('s_nop', 's_sleep', 's_setprio', 's_waitcnt', 's_endpgm'):
            self.kind = 'misc'
            self.rd = set()
            self.wr = set()
        elif mn.startswith('s_load') or mn.startswith('s_mem'):
            self.kind = 'smem'
            self.wr = R[0]
            self.rd = tail
        elif mn.startswith('s_'):
            self.kind = 'salu'
            self.wr = set(R[0])
            self.rd = set(tail)
        else:
            raise ValueError(text)


def need(rs, vm=(), lg=()):
    i = I('', 'need', rd=rs)
    i.vmwait = list(vm)
    i.lgwait = list(lg)
    return i


def label(name):
    return I(name + ':', 'label')


def comment(t):
    return I('; ' + t, 'comment')


VALU_KINDS = ('valu', 'trans', 'dpp', 'dot', 'perm', 'rdlane')
VM_KINDS = ('vml', 'vms', 'dma')
DS_KINDS = ('dsr', 'dsw')


def finalize(prog, stats=None):
    out = []
    vmq, lgq = [], []
    issued = set()
    pend = {}
    pos = 0
    lastw = {}
    lastc = {}
    lastst = {}
    reads_of = {}
    done_at_bar = set()
    nnop = nwait = 0

    for ins in prog:
        k = ins.kind
        if k in ('label', 'comment'):
            out.append(ins.text)
            continue
        vm_n = lg_n = None
        deps = [pend[r] for r in (ins.rd | ins.wr) if r in pend] + ins.vmwait + ins.lgwait
        for d in deps:
            assert id(d) in issued, f'dependency not issued yet: {d.text} for {ins.text}'
            if d in vmq:
                n = len(vmq) - 1 - vmq.index(d)
                vm_n = n if vm_n is None else min(vm_n, n)
            elif d in lgq:
                n = len(lgq) - 1 - lgq.index(d)
                lg_n = n if lg_n is None else min(lg_n, n)
        if vm_n is not None or lg_n is not None:
            w = []
            if vm_n is not None:
                vm_n = min(vm_n, 63)
                w.append(f'vmcnt({vm_n})')
                while len(vmq) > vm_n:
                    o = vmq.pop(0)
                    for r in o.wr:
                        if pend.get(r) is o:
                            del pend[r]
            if lg_n is not None:
                lg_n = min(lg_n, 15)
                w.append(f'lgkmcnt({lg_n})')
                while len(lgq) > lg_n:
                    o = lgq.pop(0)
                    for r in o.wr:
                        if pend.get(r) is o:
                            del pend[r]
            out.append('s_waitcnt ' + ' '.join(w))
            pos += 1
            nwait += 1
        if k == 'need':
            continue
        if k == 'misc' and ins.text.startswith('s_waitcnt'):
            m = re.search(r'vmcnt\((\d+)\)', ins.text)
            if m:
                while len(vmq) > int(m.group(1)):
                    o = vmq.pop(0)
                    for r in o.wr:
                        if pend.get(r) is o:
                            del pend[r]
            m = re.search(r'lgkmcnt\((\d+)\)', ins.text)
            if m:
                while len(lgq) > int(m.group(1)):
                    o = lgq.pop(0)
                    for r in o.wr:
                        if pend.get(r) is o:
                            del pend[r]
        if ins.over is not None:
            fid, shared = ins.over
            for o in reads_of.get(fid, []):
                if shared:
                    assert id(o) in done_at_bar, f'LDS WAR (shared) {fid}: {ins.text}'
                else:
                    assert o not in lgq, f'LDS WAR (private) {fid}: {ins.text}'
            reads_of.setdefault(('dead', fid), [])
        if ins.fill is not None:
            assert ('dead', ins.fill) not in reads_of, f'read of overwritten fill {ins.fill}'
            reads_of.setdefault(ins.fill, []).append(ins)
        if k == 'bar':
            for lst in reads_of.values():
                for o in lst:
                    if o not in lgq:
                        done_at_bar.add(id(o))
        req = 0

        def want(p, states):
            nonlocal req
            req = max(req, p + 1 + states - pos)

        for r in ins.rd:
            lw = lastw.get(r)
            if lw is None:
                continue
            wk, wp, wi = lw
            if wk == 'mfma':
                if k == 'mfma':
                    if r in ins.srcab:
                        want(wp, 8)
                    if r in ins.srcc and ins.srcc != wi.wr:
                        want(wp, 6)
                else:
                    want(wp, 8)
            elif wk in VALU_KINDS:
                if r[0] in 'va' and r != 'vcc':
                    if k == 'mfma':
                        want(wp, 3 if wk == 'dot' else 2)
                    elif k in ('perm', 'dpp'):
                        want(wp, 3 if wk == 'dot' else 2)
                    elif k == 'rdlane':
                        want(wp, 3 if wk == 'dot' else 1)
                    elif wk == 'trans' and k != 'trans':
                        want(wp, 1)
                    elif wk == 'dot':
                        if not (k == 'dot' and r in ins.wr):
                            want(wp, 3)
                else:
                    if k in VALU_KINDS:
                        want(wp, 4 if k == 'rdlane' else 2)
                    elif k in VM_KINDS:
                        want(wp, 5)
                    else:
                        want(wp, 1)
            elif wk == 'salu' and r == 'm0' and k == 'dma':
                want(wp, 1)
        for r in ins.wr:
            lw = lastw.get(r)
            if lw is not None and lw[0] == 'mfma' and k != 'mfma':
                want(lw[1], 8)
            if lw is not None and lw[0] == 'dot' and k != 'dot':
                want(lw[1], 3)
            if k in VALU_KINDS and r in lastc:
                want(lastc[r], 3)
            if r in lastst:
                want(lastst[r], 2)
        while req > 0:
            n = min(req, 16)
            out.append(f's_nop {n - 1}')
            pos += n
            req -= n
            nnop += n
        out.append(ins.text + (f'   ; {ins.note}' if ins.note else ''))
        issued.add(id(ins))
        if k in VM_KINDS:
            vmq.append(ins)
        if k in DS_KINDS:
            lgq.append(ins)
        if k in ('vml', 'dsr'):
            for r in ins.wr:
                pend[r] = ins
                lastw.pop(r, None)
        else:
            for r in ins.wr:
                lastw[r] = (k, pos, ins)
        if k == 'mfma':
            for r in ins.srcc:
                lastc[r] = pos
        if k == 'vms' and ins.wide:
            for r in ins.srcab:
                lastst[r] = pos
        if k == 'misc' and ins.text.startswith('s_nop'):
            pos += int(ins.text.split()[1]) + 1
        else:
            pos += 1
    if stats is not None:
        stats['nops'] = nnop
        stats['waits'] = nwait
        stats['n'] = len(out)
    return out
```

```python
import sys, os
sys.path.insert(0, os.path.dirname(os.path.abspath(__file__)))
from asmlib import *

KNAME = 'gated_mix__linear_attn_block__glu_gated_reglu__prompt_kernel'

WS_H, WS_KV, WS_Z, WS_G, WS_HF, WS_KVF, WS_DIAG, WS_SIZE = (
    0, 0x900000, 0x980000, 0x988000, 0x990000, 0x994000, 0x9A0000, 0x9C0000)
BIG = 0x40000000
SLOT = 16384
LOG2E = 0x3fb8aa3b
EPS = 0x358637bd
ST_GU, ST_QKV, ST_W2 = 3584, 3072, 1024

DEFAULTS = dict(
    diag=False, rot=True, q1=2, q2=2, q3=2, p2tail=3, spin=200000,
    e1_rate=(1, 1), out_flags='', in_flags='',
    flag_delay=9, flag_delay2=6,
)


class Pool:
    def __init__(self, lo, hi, f):
        self.n, self.hi, self.f = lo, hi, f

    def get(self, n=1, align=1):
        self.n = (self.n + align - 1) // align * align
        b = self.n
        self.n += n
        assert self.n <= self.hi, 'out of registers ' + self.f
        return b


S_X, S_QKV, S_GU, S_WD, S_WO, S_WS, S_OUT, S_DBG, S_GW = 28, 32, 36, 40, 44, 48, 52, 56, 60
ACC0, ACC1, WB0 = 128, 192, 104


class Unit:
    def __init__(self):
        self.pre, self.mf, self.fixed = [], [], []
        self.quota = 0
        self.erate = 0
        self.buf = None


class Gen:
    def __init__(self, typ, o):
        self.typ, self.o = typ, o
        self.p = []
        self.slow = []
        self.npoll = 0
        self.nstamp = 0
        sp = Pool(64, 102, 's')
        names = ('w th ch r pq pl r2 c i8 xbase m0b col1 col2 col3 soff tmp hoff hb4 hb2 wb4 wb2 '
                 'stb st0 st1 hfst hfpo kvo spin').split()
        self.s = {n: sp.get() for n in names}
        self.s['kb'] = sp.get(8)
        self.s['kb3'] = 24
        vp = Pool(1, WB0, 'v')
        self.vp = vp
        v = {}
        v['gx'] = vp.get(8, 4)
        v['gw'] = vp.get(8, 4)
        for n in 'lane l16 one p3 p7 p15 poll g goff zoff t0 t1 t2 t3 dummy fl'.split():
            v[n] = vp.get()
        for n in 'dx dgu dqkv dh d2 hl gv gm'.split():
            v[n] = vp.get(4)
        for n in 'r1 r2 r3'.split():
            v[n] = vp.get(4)
        v['rp'] = vp.get(8)
        v['rx'] = vp.get(4)
        v['ones'] = vp.get(4, 4)
        v['kvf'] = vp.get(8, 4)
        self.v = v

    def S(self, n, k=0):
        return 's%d' % (self.s[n] + k)

    def V(self, n, k=0, w=1):
        return vr(self.v[n] + k, w)

    def e(self, x):
        if isinstance(x, str):
            for l in x.split('\n'):
                l = l.strip()
                if l:
                    self.p.append(I(l))
        elif isinstance(x, I):
            self.p.append(x)
        else:
            for y in x:
                self.e(y)

    def raw(self, text):
        return [I(l.strip(), 'label' if l.strip().endswith(':') else 'misc') for l in text.split('\n') if l.strip()]

    def stamp(self):
        if not self.o['diag']:
            return []
        k = self.nstamp
        self.nstamp += 1
        assert k < 10
        return self.raw(f's_memtime s[{4 + 2 * k}:{5 + 2 * k}]')

    def poll(self, srd, voff, soff, imm, val):
        k = self.npoll
        self.npoll += 1
        P = self.V('poll')
        if voff is None:
            ld = f'buffer_load_dword {P}, off, {sr(srd, 4)}, {soff} sc1'
        else:
            ld = f'buffer_load_dword {P}, {voff}, {sr(srd, 4)}, {soff} offen offset:{imm} sc1'
        t = self.typ
        chk = [I(f'v_cmp_gt_u32 vcc, {val}, {P}'), I(f's_cbranch_vccnz L{t}_slow{k}'), label(f'L{t}_back{k}')]
        self.slow += [f'L{t}_slow{k}:', f's_mov_b32 {self.S("spin")}, {self.o["spin"]}', f'L{t}_spin{k}:', ld,
                      's_waitcnt vmcnt(0)', f'v_cmp_gt_u32 vcc, {val}, {P}', f's_cbranch_vccz L{t}_back{k}',
                      f's_sub_u32 {self.S("spin")}, {self.S("spin")}, 1', f's_cmp_lg_u32 {self.S("spin")}, 0',
                      f's_cbranch_scc1 L{t}_spin{k}', f's_branch L{t}_back{k}']
        return [I(ld)], chk

    def fill(self, fid, slot, prev, srd, vbase, soff_ins, gate, weight=1):
        ops = []
        for i in range(4):
            d = I(f'buffer_load_dwordx4 {vr(vbase + i)}, {sr(srd, 4)}, {self.S("soff")} offen offset:{i * 1024} {self.o["in_flags"]} lds')
            d.over = prev
            d.note = f'{fid}.{i}'
            item = [d]
            if i == 0:
                item = [I(f's_add_u32 m0, {self.S("m0b")}, {slot * SLOT}')] + [I(x) for x in soff_ins] + item
            self.stream.append(dict(item=item, gate=gate, w=weight))
            ops.append(d)
        self.fills[fid] = dict(slot=slot, ops=ops)

    def alloc_slot(self, fid, release, shared):
        self.free.sort(key=lambda x: (x[0], x[1]))
        gate, slot, prev = self.free.pop(0)
        self.free.append((release, slot, (fid, shared)))
        return slot, prev, gate

    def flush_stream_for(self, ops):
        want = {id(x) for x in ops}
        last = -1
        for n, st in enumerate(self.stream):
            if any(id(x) in want for x in st['item']):
                last = n
        for _ in range(last + 1):
            st = self.stream.pop(0)
            assert st['gate'] <= self.cur, ('forced past gate', st['item'][-1].text, st['gate'], self.cur)
            self.forced += 1
            self.e(st['item'])

    def emit_dep(self, items):
        for x in items:
            if x.vmwait:
                self.flush_stream_for(x.vmwait)
            self.e(x)

    def try_stream(self):
        if self.stream and self.stream[0]['gate'] <= self.cur:
            st = self.stream.pop(0)
            self.e(st['item'])
            return st
        return None

    def try_epi(self):
        if self.epi and self.epi[0]['gate'] <= self.cur:
            it = self.epi[0]
            dep = it.get('dep')
            if dep is not None and any(any(x is dep for x in st['item']) for st in self.stream):
                return None
            self.epi.pop(0)
            self.emit_dep(it['item'])
            return it
        return None

    def emit_unit(self, ui):
        u = self.units[ui]
        self.cur = ui
        self.e(comment(f'---- unit {ui}'))
        self.emit_dep(u.pre)
        n = len(u.mf)
        fixed = list(u.fixed)
        nfix = len(fixed)
        fgaps = max(1, n - 2)
        self.credit = min(self.credit, 1.0)
        for k, m in enumerate(u.mf):
            self.e(m)
            tgt = -(-nfix * (k + 1) // fgaps)
            while fixed and nfix - len(fixed) < tgt:
                self.emit_dep(fixed.pop(0))
            self.credit += u.quota / n
            while self.credit >= 1:
                st = self.try_stream()
                if st is None:
                    break
                self.credit -= st['w']
            self.ecredit = min(self.ecredit + u.erate, max(2, 2 * u.erate))
            while self.ecredit >= 1:
                it = self.try_epi()
                if it is None:
                    break
                self.ecredit -= len(it['item'])

    def block(self, gate_to, per=14):
        self.cur = gate_to
        n = 0
        while self.epi and self.epi[0]['gate'] <= gate_to:
            it = self.try_epi()
            if it is None:
                st = self.try_stream()
                assert st is not None, 'epilogue blocked'
                continue
            n += sum(x.cost for x in it['item']) / 4
            if n >= per:
                n = 0
                self.try_stream()

    def Q(self, text, gate, dep=None):
        if isinstance(text, str):
            r = None
            for l in text.split('\n'):
                if l.strip():
                    r = I(l.strip())
                    self.epi.append(dict(item=[r], gate=gate, dep=dep))
            return r
        self.epi.append(dict(item=list(text), gate=gate, dep=dep))

    def q_flag(self, stores, soff, val, gate):
        st = I(f'buffer_store_dword {self.V("fl")}, {self.V("one")}, {sr(S_WS, 4)}, {soff} offen sc1')
        st.vmwait = list(stores)
        self.Q([I(f'v_mov_b32 {self.V("fl")}, {val}'), st], gate)

    def q_gstore(self, gate):
        S = self.S
        self.Q(f'''s_lshl_b32 {S("st1")}, {S("gtok")}, 2
                   s_add_u32 {S("st1")}, {S("st1")}, {WS_G}''', gate)
        return self.Q(f'buffer_store_dword {self.V("g")}, {self.V("goff")}, {sr(S_WS, 4)}, {S("st1")} offen sc1', gate)

    def q_eh(self, T, slots, kk_expr, gate, perm):
        S = self.S
        self.Q(kk_expr, gate)
        if perm:
            self.Q(f'''s_lshl_b32 {S("tmp")}, {S("ch")}, 11
                       s_sub_u32 {S("st1")}, {S("st0")}, {S("tmp")}
                       s_add_u32 {S("st0")}, {S("st0")}, {S("tmp")}''', gate)
        stores = []
        for s in slots:
            for j in (0, 1):
                G, U = T(j, s), T(j + 2, s)
                for i in range(4):
                    self.Q(f'v_max_f32 v{G + i}, 0, v{G + i}', gate)
                for i in range(4):
                    self.Q(f'v_mul_f32 v{G + i}, v{G + i}, v{U + i}', gate)
            D = T(2, s)
            for i in range(4):
                G = T(i >> 1, s) + 2 * (i & 1)
                self.Q(f'v_cvt_pk_bf16_f32 v{D + i}, v{G}, v{G + 1}', gate)
        for s in slots:
            so = S('st1') if (perm and s >= 2) else S('st0')
            stores.append(self.Q(f'buffer_store_dwordx4 {vr(T(2, s), 4)}, {self.V("l16")}, {sr(S_WS, 4)}, {so} offen offset:{s * 1024} sc1', gate))
        return stores

    def q_phi(self, r, gate):
        t = [self.V('t0'), self.V('t1'), self.V('t2'), self.V('t3')]
        for i in range(4):
            self.Q(f'v_mul_f32 {t[i]}, {LOG2E:#x}, v{r + i}', gate)
        for i in range(4):
            self.Q(f'v_exp_f32 {t[i]}, {t[i]} clamp', gate)
            self.Q(f'v_max_f32 v{r + i}, {EPS:#x}, v{r + i}', gate)
        for i in range(4):
            self.Q(f'v_add_f32 v{r + i}, v{r + i}, {t[i]}', gate)

    def setup_late(self):
        S, V, e, typ = self.S, self.V, self.e, self.typ
        L = V('lane')
        t0, t1, t2, t3 = V('t0'), V('t1'), V('t2'), V('t3')
        for srd, p, n in ((S_WD, 16, 1792 * 1024), (S_WO, 8, 512 * 1024), (S_OUT, 20, 2048 * 1024)):
            e(f's_mov_b32 s{srd}, s{p}\ns_mov_b32 s{srd + 1}, s{p + 1}\ns_mov_b32 s{srd + 2}, {n}\ns_mov_b32 s{srd + 3}, 0x20000')
        second = (S_QKV, 'dqkv', ST_QKV) if typ == 'A' else (S_GU, 'dgu', ST_GU)
        self.srd_w(second[0])
        self.dma_off_w(second[1], second[2])
        e(f'''v_lshrrev_b32 {t0}, 4, {L}
              v_bfe_u32 {t1}, {L}, 2, 2
              v_lshl_add_u32 {t0}, {t0}, 3, {t1}
              v_and_b32 {t1}, 3, {L}
              v_lshlrev_b32 {t1}, 3, {t1}
              v_bfe_u32 {t2}, {L}, 3, 2
              v_lshlrev_b32 {t2}, 5, {t2}
              v_lshl_add_u32 {t3}, {t0}, 7, {t1}
              v_or_b32 {t3}, {t3}, {t2}
              s_lshl_b32 {S("tmp")}, {S("ch")}, 6
              v_xor_b32 {V("r2", 0)}, {S("tmp")}, {t3}
              v_xor_b32 {V("r2", 1)}, 32, {V("r2", 0)}
              v_add_u32 {V("r2", 2)}, 0x10000, {V("r2", 0)}
              v_add_u32 {V("r2", 3)}, 0x10000, {V("r2", 1)}
              v_add_u32 {V("rp", 0)}, {S("m0b")}, {t3}''')
        e(f'''v_xor_b32 {V("rp", 1)}, 32, {V("rp", 0)}
              v_xor_b32 {V("rp", 2)}, 64, {V("rp", 0)}
              v_xor_b32 {V("rp", 3)}, 0x60, {V("rp", 0)}''')
        for u in range(4):
            e(f'v_add_u32 {V("rp", 4 + u)}, 0x10000, {V("rp", u)}')
        if typ == 'B':
            e(f's_lshl_b32 {S("tmp")}, {S("th")}, 5')
            for k in range(4):
                e(f'v_xor_b32 {V("r1", k)}, {S("tmp")}, {V("r2", k)}')
            e(f'''v_lshl_add_u32 {t3}, {t0}, 6, {t1}
                  v_bfe_u32 {t2}, {L}, 4, 1
                  v_lshl_or_b32 {V("r3", 0)}, {t2}, 5, {t3}
                  v_xor_b32 {V("r3", 1)}, 32, {V("r3", 0)}
                  v_add_u32 {V("r3", 2)}, 0x10000, {V("r3", 0)}
                  v_add_u32 {V("r3", 3)}, 0x10000, {V("r3", 1)}''')
            e(f'''v_lshrrev_b32 {t0}, 2, {L}
                  v_mul_u32_u24 {t0}, {ST_GU}, {t0}
                  v_lshrrev_b32 {t1}, 5, {L}
                  v_lshlrev_b32 {t1}, 1, {t1}
                  v_and_b32 {t2}, 3, {L}
                  v_xor_b32 {t1}, {t1}, {t2}
                  v_lshl_add_u32 {V("dh", 0)}, {t1}, 4, {t0}''')
            for i in range(1, 4):
                e(f'v_add_u32 {V("dh", i)}, {i * (16 * ST_GU - 1024)}, {V("dh", 0)}')
            for i in range(4):
                e(f'v_mov_b32 {V("ones", i)}, 0x3f803f80')
        e(f'''v_and_b32 {t0}, 15, {L}
              v_lshrrev_b32 {t1}, 4, {L}
              v_bfe_u32 {t2}, {L}, 1, 3
              v_xor_b32 {t1}, {t1}, {t2}
              v_lshlrev_b32 {t1}, 4, {t1}
              v_lshl_add_u32 {t0}, {t0}, 7, {t1}
              s_lshl_b32 {S("tmp")}, {S("th")}, 13
              s_add_u32 {S("tmp")}, {S("tmp")}, {6 * SLOT}''')
        if typ == 'A':
            e(f'''v_add_u32 {V("rx", 0)}, {S("tmp")}, {t0}
                  v_xor_b32 {V("rx", 1)}, 64, {V("rx", 0)}''')
        else:
            e(f'''s_lshl_b32 {S("st0")}, {S("ch")}, 12
                  s_add_u32 {S("tmp")}, {S("tmp")}, {S("st0")}
                  v_add_u32 {V("rx", 0)}, {S("tmp")}, {t0}
                  v_xor_b32 {V("rx", 1)}, 64, {V("rx", 0)}
                  v_xor_b32 {V("rx", 2)}, 0x1000, {V("rx", 0)}
                  v_xor_b32 {V("rx", 3)}, 0x1000, {V("rx", 1)}''')
        e(f'''v_lshrrev_b32 {t0}, 5, {L}
              v_bfe_u32 {t1}, {L}, 3, 2
              v_lshl_add_u32 {t0}, {t0}, 4, {t1}
              v_lshlrev_b32 {t0}, 10, {t0}
              v_bfe_u32 {t1}, {L}, 4, 1
              v_lshlrev_b32 {t1}, 1, {t1}
              v_and_b32 {t2}, 7, {L}
              v_xor_b32 {t1}, {t1}, {t2}
              v_lshl_add_u32 {V("d2", 0)}, {t1}, 4, {t0}
              v_xor_b32 {t0}, 64, {V("d2", 0)}
              v_add_u32 {V("d2", 1)}, {3 * 1024}, {t0}
              v_add_u32 {V("d2", 2)}, {6 * 1024}, {V("d2", 0)}
              v_add_u32 {V("d2", 3)}, {9 * 1024}, {t0}''')
        e(f'''s_lshl_b32 {S("tmp")}, {S("w")}, 10
              v_or_b32 {V("hl", 0)}, {S("tmp")}, {V("l16")}''')
        for s in range(1, 4):
            e(f'v_xor_b32 {V("hl", s)}, {s * 1024}, {V("hl", 0)}')
        e(f'''v_and_b32 {t0}, 15, {L}
              v_lshlrev_b32 {V("p15")}, 2, {t0}
              v_and_b32 {V("p7")}, 28, {V("p15")}
              v_and_b32 {V("p3")}, 12, {V("p15")}
              v_mov_b32 {t1}, {BIG:#x}
              v_cmp_eq_u32 vcc, 0, {t0}
              v_cndmask_b32 {V("zoff")}, {t1}, {L}, vcc
              v_cmp_eq_u32 vcc, 0, {L}
              v_cndmask_b32 {V("one")}, {t1}, {L}, vcc
              v_and_b32 {t0}, 31, {L}
              v_lshrrev_b32 {t2}, 3, {L}
              v_cmp_eq_u32 vcc, 0, {t0}
              v_cndmask_b32 {V("goff")}, {t1}, {t2}, vcc''')
        e(f'''s_mul_i32 {S("tmp")}, {S("r2")}, {72 * 4096}
              s_lshl_b32 {S("hb4")}, {S("w")}, 14
              s_lshl_b32 {S("hb2")}, {S("w")}, 13
              s_add_u32 {S("hb4")}, {S("hb4")}, {S("tmp")}
              s_add_u32 {S("hb2")}, {S("hb2")}, {S("tmp")}
              s_lshl_b32 {S("tmp")}, {S("c")}, 7
              s_lshl_b32 {S("wb4")}, {S("w")}, 17
              s_lshl_b32 {S("wb2")}, {S("w")}, 16
              s_add_u32 {S("wb4")}, {S("wb4")}, {S("tmp")}
              s_add_u32 {S("wb2")}, {S("wb2")}, {S("tmp")}
              s_lshl_b32 {S("tmp")}, {S("r")}, 1
              s_add_u32 {S("tmp")}, {S("tmp")}, {S("th")}
              s_mul_i32 {S("stb")}, {S("tmp")}, {72 * 4096}
              s_lshl_b32 {S("tmp")}, {S("tmp")}, 2
              s_add_u32 {S("tmp")}, {S("tmp")}, {S("pq")}
              s_lshl_b32 {S("hfst")}, {S("tmp")}, 7
              s_lshl_b32 {S("tmp")}, {S("pl")}, 1
              s_add_u32 {S("tmp")}, {S("tmp")}, {S("ch")}
              s_lshl_b32 {S("tmp")}, {S("tmp")}, 2
              s_add_u32 {S("hfst")}, {S("hfst")}, {S("tmp")}
              s_add_u32 {S("hfst")}, {S("hfst")}, {WS_HF}
              s_lshl_b32 {S("tmp")}, {S("r2")}, 2
              s_add_u32 {S("tmp")}, {S("tmp")}, {S("w")}
              s_lshl_b32 {S("hfpo")}, {S("tmp")}, 7
              s_add_u32 {S("hfpo")}, {S("hfpo")}, {WS_HF}
              s_lshl_b32 {S("kvo")}, {S("i8")}, 2
              s_lshl_b32 {S("tmp")}, {S("ch")}, 1
              s_add_u32 {S("kvo")}, {S("kvo")}, {S("tmp")}
              s_add_u32 {S("kvo")}, {S("kvo")}, {S("th")}''')
        if typ == 'A':
            e(f'''s_add_u32 {S("col2")}, {S("col1")}, {8 * 128}
                  s_lshl_b32 {S("col3")}, {S("i8")}, 7''')
            par = S('th')
        else:
            e(f'''s_lshl_b32 {S("col2")}, {S("i8")}, 7
                  s_add_u32 {S("col2")}, {S("col2")}, {16 * 128}
                  s_lshl_b32 {S("col3")}, {S("i8")}, 6
                  s_add_u32 {S("col3")}, {S("col3")}, {24 * 128}''')
            par = S('ch')
        for j in range(4):
            e(f'''s_add_u32 {S("tmp")}, {S("kb", 2 * j)}, {par}
                  s_and_b32 {S("kb3", j)}, {S("tmp")}, 7''')

    def srd_w(self, srd):
        e, S = self.e, self.S
        if srd == S_QKV:
            e(f's_mov_b32 s{srd}, s6\ns_mov_b32 s{srd + 1}, s7\ns_mov_b32 s{srd + 2}, {512 * ST_QKV}\ns_mov_b32 s{srd + 3}, 0x20000')
        else:
            e(f'''s_cmp_eq_u32 {S("th")}, 0
                  s_cselect_b32 s{srd}, s12, s14
                  s_cselect_b32 s{srd + 1}, s13, s15
                  s_mov_b32 s{srd + 2}, {512 * ST_GU}
                  s_mov_b32 s{srd + 3}, 0x20000''')

    def dma_off_w(self, name, stride):
        e, V, S = self.e, self.V, self.S
        L = V('lane')
        t0, t1, t2 = V('t0'), V('t1'), V('t2')
        e(f'''v_lshrrev_b32 {t0}, 3, {L}
              s_lshl_b32 {S("tmp")}, {S("ch")}, 5
              v_add_u32 {t0}, {S("tmp")}, {t0}
              v_mul_u32_u24 {t0}, {stride}, {t0}
              v_bfe_u32 {t1}, {L}, 4, 1
              v_lshlrev_b32 {t1}, 1, {t1}
              v_and_b32 {t2}, 7, {L}
              v_xor_b32 {t1}, {t1}, {t2}
              v_lshl_add_u32 {V(name, 0)}, {t1}, 4, {t0}
              v_xor_b32 {t0}, 64, {V(name, 0)}
              v_add_u32 {V(name, 1)}, {8 * stride - 1024}, {t0}
              v_add_u32 {V(name, 2)}, {16 * stride - 2048}, {V(name, 0)}
              v_add_u32 {V(name, 3)}, {24 * stride - 3072}, {t0}''')

    def common_head(self):
        e, V, S = self.e, self.V, self.S
        L = V('lane')
        t0, t1, t2 = V('t0'), V('t1'), V('t2')
        e(self.raw('''s_cmp_ge_u32 s2, 256
                      s_cbranch_scc1 L_end
                      s_load_dwordx16 s[4:19], s[0:1], 0
                      s_load_dwordx4 s[20:23], s[0:1], 64
                      s_load_dwordx2 s[24:25], s[0:1], 80'''))
        if self.o['diag']:
            e(self.raw('s_memtime s[100:101]\ns_memrealtime s[26:27]'))
        e(f'''v_lshrrev_b32 {t0}, 6, v0
              v_and_b32 {L}, 63, v0
              v_readfirstlane_b32 {S("w")}, {t0}
              v_lshlrev_b32 {V("l16")}, 4, {L}
              s_and_b32 {S("tmp")}, s2, 7
              s_lshr_b32 {S("soff")}, s2, 3
              s_lshr_b32 {S("pq")}, {S("tmp")}, 1
              s_and_b32 {S("r")}, {S("tmp")}, 1
              s_lshl_b32 {S("r")}, {S("r")}, 3
              s_and_b32 {S("st0")}, {S("soff")}, 7
              s_add_u32 {S("r")}, {S("r")}, {S("st0")}
              s_lshr_b32 {S("pl")}, {S("soff")}, 3
              s_lshl_b32 {S("r2")}, {S("tmp")}, 2
              s_and_b32 {S("st1")}, {S("soff")}, 3
              s_add_u32 {S("r2")}, {S("r2")}, {S("st1")}
              s_lshr_b32 {S("c")}, {S("soff")}, 2
              s_lshl_b32 {S("i8")}, {S("pq")}, 1
              s_and_b32 {S("st1")}, {S("pl")}, 1
              s_add_u32 {S("i8")}, {S("i8")}, {S("st1")}
              s_lshr_b32 {S("th")}, {S("w")}, 1
              s_and_b32 {S("ch")}, {S("w")}, 1
              s_lshl_b32 {S("m0b")}, {S("w")}, 12
              s_lshl_b32 {S("xbase")}, {S("r")}, 17
              s_lshl_b32 {S("tmp")}, {S("w")}, 15
              s_add_u32 {S("xbase")}, {S("xbase")}, {S("tmp")}''')
        if self.o['rot']:
            e(f'''s_lshl_b32 {S("tmp")}, {S("pl")}, 1
                  s_add_u32 {S("tmp")}, {S("tmp")}, {S("st0")}''')
        else:
            e(f's_mov_b32 {S("tmp")}, 0')
        for k in range(8):
            e(f's_and_b32 {S("kb", k)}, {S("tmp")}, 7\ns_add_u32 {S("tmp")}, {S("tmp")}, 1')
        e(f'''v_lshrrev_b32 {t0}, 3, {L}
              v_lshlrev_b32 {t0}, 10, {t0}
              v_lshrrev_b32 {t1}, 4, {L}
              v_and_b32 {t2}, 7, {L}
              v_xor_b32 {t1}, {t1}, {t2}
              v_lshl_add_u32 {V("dx", 0)}, {t1}, 4, {t0}
              v_xor_b32 {t0}, 64, {V("dx", 0)}
              v_add_u32 {V("dx", 1)}, {7 * 1024}, {t0}
              v_add_u32 {V("dx", 2)}, {14 * 1024}, {V("dx", 0)}
              v_add_u32 {V("dx", 3)}, {21 * 1024}, {t0}
              s_cmp_ge_u32 {S("pl")}, 2
              s_cbranch_scc1 L_roleB''')

    def build(self):
        o, typ, e, S, V = self.o, self.typ, self.e, self.S, self.V
        L = V('lane')
        t0, t1, t2, t3 = V('t0'), V('t1'), V('t2'), V('t3')
        self.s['gtok'] = 3
        self.stream, self.epi, self.fills, self.units = [], [], {}, []
        self.cur, self.credit, self.ecredit, self.forced = -1, 0.0, 0.0, 0
        isA = typ == 'A'
        U = []
        info = []
        for ps in (1, 2):
            for s in range(8):
                for j in range(4):
                    info.append((ps, s, j))
        for s in range(8):
            for j in range(2 if isA else 4):
                info.append((3, s, j))
        P3 = 64
        P2 = len(info)
        n3 = (P2 - P3) // 8
        for s in range(9):
            for j in range(4):
                info.append((4, s, j))
        NU = len(info)
        U = [Unit() for _ in range(NU)]
        self.units = U
        issue = []
        for i, (ps, s, j) in enumerate(info):
            if ps == 3 and not isA:
                k = i - P3
                issue.append(i - 4 if k >= 4 else P3 - 2 + k // 2)
            elif ps == 4 and not isA and i - P2 < 2:
                issue.append(P2 - 4 + 2 * (i - P2))
            else:
                issue.append(i - 2)
        base_bufs = [WB0, WB0 + 8, WB0 + 16]
        extra = [ACC0 + 32, ACC0 + 40]
        for i in range(NU):
            busy = {U[k].buf for k in range(max(issue[i], 0), i)}
            pool = base_bufs + (extra if (not isA and info[i][0] == 3) else [])
            U[i].buf = [b for b in pool if b not in busy][0]
        first = [4 * n for n in range(16)] + [P3 + 2 * n3 * j for j in range(4)]
        barat = [issue[f] for f in first]
        barat.append(issue[P2])
        barat.append(P2)
        self.free = [(-1, k, None) for k in range(6)]
        fw = (S_GU, 'dgu', ST_GU) if isA else (S_QKV, 'dqkv', ST_QKV)

        def soff(kb, mul, base):
            return [f's_mul_i32 {S("soff")}, {kb}, {mul}', f's_add_u32 {S("soff")}, {S("soff")}, {base}']

        def wfill(n):
            slot, prev, gate = self.alloc_slot(('W', n), barat[n + 2], True)
            if n < 8:
                self.fill(('W', n), slot, prev, fw[0], self.v[fw[1]], soff(S('kb', n), 64 * fw[2], S('col1')), gate)
            elif n < 16:
                self.fill(('W', n), slot, prev, S_GU, self.v['dgu'], soff(S('kb', n - 8), 64 * ST_GU, S('col2')), gate)
            elif isA:
                self.fill(('W', n), slot, prev, S_QKV, self.v['dqkv'], soff(S('kb3', n - 16), 64 * ST_QKV, S('col3')), gate)
            else:
                self.fill(('W', n), slot, prev, S_GU, self.v['dh'], soff(S('kb3', n - 16), 64 * ST_GU, S('col3')), gate, weight=2)

        def xfill(n):
            prev = (('X', n - 4), True) if n >= 4 else None
            gate = barat[n - 3] if n >= 4 else -1
            self.fill(('X', n), 6 + n % 4, prev, S_X, self.v['dx'], soff(S('kb', n), 128, S('xbase')), gate)
            if n in (4, 5):
                self.free.append((barat[n + 1], 6 + n % 4, (('X', n), True)))

        p2k = [(0, 4, i) for i in range(4)] + [(16, 4, i) for i in range(4)] + [(32, 4, i) for i in range(4)] + \
              [(48, 2, i) for i in range(2)] + [(56, 4, i) for i in range(4)]

        def pfill(k):
            kk0, b, i = p2k[k]
            slot, prev, gate = self.alloc_slot(('P', k), P2 + 4 * (k // 2) + 3, False)
            srd = S_WO if kk0 == 56 else S_WD
            row = (i if kk0 == 56 else kk0 + i) * 32 * 1024
            self.fill(('P', k), slot, prev, srd, self.v['d2'], [f's_add_u32 {S("soff")}, {S("wb%d" % b)}, {row}'], gate)

        self.hops = {}

        def hload(st):
            blk = 32 * (st % 8)
            gate = P3 + n3 * (st + 1) if st < 8 else P2 + 4
            ops = []
            for kk in range(2):
                kk0, b, i = p2k[2 * st + kk]
                for s in range(4):
                    d = I(f'buffer_load_dwordx4 {ar(blk + 16 * kk + 4 * s, 4)}, {V("hl", s)}, {sr(S_WS, 4)}, {S("hoff")} offen sc1')
                    item = [d]
                    if s == 0:
                        item = [I(f's_add_u32 {S("hoff")}, {S("hb%d" % b)}, {(kk0 + i) * 4096}')] + item
                    self.stream.append(dict(item=item, gate=gate, w=1))
                    ops.append(d)
            self.hops[st] = ops

        def spoll(ldchk, gate_ld):
            self.stream.append(dict(item=ldchk[0], gate=gate_ld, w=0.25))

        def scheck(ldchk, gate):
            self.stream.append(dict(item=ldchk[1], gate=gate, w=0))

        for n in range(8):
            xfill(n)
            wfill(n)
            if n == 6:
                go = self.poll(S_DBG, None, '0', 0, 1)
                spoll(go, -1)
        wfill(8)
        wfill(9)
        scheck(go, -1)
        self.go_check = go[1][0]
        for n in range(10, 20):
            wfill(n)
        pT1 = self.poll(S_WS, V('p3'), S('hfpo'), 0, 1)
        pT2 = self.poll(S_WS, V('p7'), S('hfpo'), 0, 2)
        pT3f = self.poll(S_WS, V('p3'), S('hfpo'), 16, 3)
        pT3o = self.poll(S_WS, V('p3'), S('hfpo'), 0, 3)
        pfill(0)
        pfill(1)
        spoll(pT1, 58)
        pfill(2)
        scheck(pT1, 62)
        if isA:
            pKV = self.poll(S_WS, V('p15'), S('hoff'), 0, 1)
            pKV[0].insert(0, I(f's_lshl_b32 {S("hoff")}, {S("kvo")}, 7'))
            pKV[0].insert(1, I(f's_add_u32 {S("hoff")}, {S("hoff")}, {WS_KVF}'))
            spoll(pKV, P3)
            pfill(3)
            scheck(pKV, P3 + 4)
            KL = ACC0 + 32
            zl = I(f'buffer_load_dwordx4 {V("gx", 0, 4)}, {V("dummy")}, {sr(S_WS, 4)}, {S("hoff")} offen sc1')
            self.stream.append(dict(item=[I(f's_lshl_b32 {S("hoff")}, {S("kvo")}, 10'),
                                          I(f's_add_u32 {S("hoff")}, {S("hoff")}, {WS_Z}'),
                                          I(f'v_lshrrev_b32 {V("dummy")}, 4, {L}'),
                                          I(f'v_add_u32 {V("dummy")}, {V("dummy")}, {V("p15")}'),
                                          I(f'v_lshlrev_b32 {V("dummy")}, 4, {V("dummy")}'), zl], gate=P3 + 4, w=1))
            kvl = []
            self.kv_second = []
            for r in range(16):
                dst = V('gw', 0, 4) if r == 0 else vr(KL + 4 * ((r - 1) % 8), 4)
                d = I(f'buffer_load_dwordx4 {dst}, {V("l16")}, {sr(S_WS, 4)}, {S("hoff")} offen offset:{(r % 4) * 1024} sc1')
                item = [d]
                if r == 0:
                    item = [I(f's_lshl_b32 {S("hoff")}, {S("kvo")}, 14'), I(f's_add_u32 {S("hoff")}, {S("hoff")}, {WS_KV}')] + item
                elif r % 4 == 0:
                    item = [I(f's_add_u32 {S("hoff")}, {S("hoff")}, 4096')] + item
                if r >= 9:
                    q = KL + 4 * ((r - 1) % 8)
                    item = [I(f'v_add_f32 {V("gw", i)}, {V("gw", i)}, v{q + i}') for i in range(4)] + item
                self.stream.append(dict(item=item, gate=P3 + 4, w=1))
                kvl.append(d)
        else:
            pfill(3)
        hload(0)
        hload(1)
        pfill(4)
        pfill(5)
        spoll(pT2, P2)
        pfill(6)
        pfill(7)
        scheck(pT2, P2 + 2)
        self.t2_check = pT2[1][0]
        hload(2)
        hload(3)
        pfill(8)
        pfill(9)
        hload(4)
        spoll(pT3f, P2 + 8)
        pfill(10)
        pfill(11)
        hload(5)
        scheck(pT3f, P2 + 8)
        pfill(12)
        pfill(13)
        hload(6)
        spoll(pT3o, P2 + 12)
        pfill(14)
        pfill(15)
        scheck(pT3o, P2 + 12)
        hload(7)
        pfill(16)
        pfill(17)
        hload(8)

        def T12(acc):
            return lambda j, s: acc + (j * 4 + s) * 4
        T1, T2 = T12(ACC0), T12(ACC1)
        T3 = T12(ACC0) if isA else (lambda j, s: ACC0 + (j * 2 + s) * 4)
        pre_reads = []
        for i, (ps, s, j) in enumerate(info):
            u = U[i]
            rd = []
            for kk in range(2):
                for hf in range(2):
                    if ps <= 2:
                        fid = ('W', 8 * (ps - 1) + s)
                        off = (j >> 1) * 8192 + kk * 4096 + hf * 512
                        an, ak, nw = ('r1' if (ps == 1 and not isA) else 'r2'), j & 1, 2
                    elif ps == 3:
                        fid = ('W', 16 + s // 2)
                        if isA:
                            off = (s & 1) * 8192 + kk * 4096 + hf * 512
                            an, ak, nw = 'r2', j, 2
                        else:
                            off = ((j >> 1) * 2 + (s & 1)) * 4096 + kk * 2048 + hf * 256
                            an, ak, nw = 'r3', j & 1, 2
                    else:
                        fid = ('P', 2 * s + kk)
                        off = hf * 512
                        an, ak, nw = 'rp', j, 4
                    slot = self.fills[fid]['slot']
                    x = I(f'ds_read_b64_tr_b16 {vr(u.buf + 4 * kk + 2 * hf, 2)}, {V(an, ak + nw * (slot // 4))} offset:{(slot % 4) * SLOT + off}')
                    x.fill = fid
                    if ps == 4 and j == 0 and hf == 0:
                        x.vmwait = [self.fills[fid]['ops'][-1]]
                    rd.append([x])
            xr = []
            if ps == 1 and j < 2:
                slot = self.fills[('X', s)]['slot']
                for sl in range(4):
                    if isA:
                        a, off = V('rx', j), sl * 2048
                    else:
                        a, off = V('rx', j + 2 * (sl >> 1)), (sl & 1) * 2048
                    x = I(f'ds_read_b128 {ar(32 * s + 16 * j + 4 * sl, 4)}, {a} offset:{(slot - 6) * SLOT + off}')
                    x.fill = ('X', s)
                    xr.append([x])
            (U[issue[i]].fixed if issue[i] >= 0 else pre_reads).extend(xr + rd)
            slots = range(2) if (ps == 3 and not isA) else range(4)
            if j & 1:
                slots = reversed(slots)
            if ps == 4:
                T = T2 if s < 7 else T1
                blk, fst = 32 * (s % 8), s in (0, 7)
            else:
                T = (T1, T2, T3)[ps - 1]
                blk, fst = 32 * s, s == 0
            nd = set()
            for sl in slots:
                for kk in range(2):
                    D = vr(T(j, sl), 4)
                    W = vr(u.buf + 4 * kk, 4)
                    X = ar(blk + 16 * kk + 4 * sl, 4)
                    C = '0' if (fst and kk == 0) else D
                    a, b = (X, W) if (ps == 1 and not isA) else (W, X)
                    m = I(f'v_mfma_f32_16x16x32_bf16 {D}, {a}, {b}, {C}')
                    u.mf.append(m)
                    nd |= m.srcab
            npre = need(nd)
            if ps == 4 and j == 0:
                npre.vmwait = [self.hops[s][-1]]
            u.pre.append(npre)
            u.quota = {1: o['q1'], 2: o['q2'], 3: o['q3'] * 2 / n3, 4: 0}[ps]
        bars = {}
        for n, at in enumerate(barat):
            b = I('s_barrier')
            if n < 20:
                b.vmwait = [self.fills[('W', n)]['ops'][-1]] + ([self.fills[('X', n)]['ops'][-1]] if n < 8 else [])
            bars[n] = b
            if at >= 0:
                U[at].pre.append(b)

        if not isA:
            e(label('L_roleB'))
        self.dma_off_w(fw[1], fw[2])
        if isA:
            e(f's_lshl_b32 {S("col1")}, {S("i8")}, 7')
        else:
            e(f'''s_lshl_b32 {S("col1")}, {S("i8")}, 7
                  s_add_u32 {S("tmp")}, {S("th")}, 1
                  s_lshl_b32 {S("tmp")}, {S("tmp")}, 10
                  s_add_u32 {S("col1")}, {S("col1")}, {S("tmp")}''')
        e(self.raw('s_waitcnt lgkmcnt(0)'))
        for srd, p, n in ((S_X, 4, 2048 * 1024), (S_WS, 24, WS_SIZE), (S_DBG, 22, 256), (S_GW, 18, 1024)):
            e(f's_mov_b32 s{srd}, s{p}\ns_mov_b32 s{srd + 1}, s{p + 1}\ns_mov_b32 s{srd + 2}, {n}\ns_mov_b32 s{srd + 3}, 0x20000')
        self.srd_w(fw[0])
        if o['diag']:
            e(f'v_mov_b32 {V("kvf", 7)}, s26' if not isA else f'v_mov_b32 {V("ones", 3)}, s26')
        if isA:
            z = V('gw', 0, 4)
            e(self.raw(f'''s_or_b32 {S("tmp")}, s2, {S("w")}
                           s_cbranch_scc1 LA_noclear
                           v_mov_b32 {V("gw", 0)}, 0
                           v_mov_b32 {V("gw", 1)}, 0
                           v_mov_b32 {V("gw", 2)}, 0
                           v_mov_b32 {V("gw", 3)}, 0
                           v_lshrrev_b32 {t0}, 2, {L}
                           v_lshlrev_b32 {t0}, 7, {t0}
                           v_and_b32 {t1}, 48, {V("l16")}
                           v_or_b32 {t0}, {t0}, {t1}
                           s_mov_b32 {S("tmp")}, {WS_HF}'''))
            for k in range(10):
                e(self.raw(f'''buffer_store_dwordx4 {z}, {t0}, {sr(S_WS, 4)}, {S("tmp")} offen sc1
                               s_add_u32 {S("tmp")}, {S("tmp")}, 2048'''))
            e(self.raw('s_nop 1\nLA_noclear:'))
        for _ in range(16):
            self.e(self.stream.pop(0)['item'])
        e(f'''s_lshl_b32 {S("gtok")}, {S("r")}, 1
              s_add_u32 {S("gtok")}, {S("gtok")}, {S("th")}
              s_lshl_b32 {S("gtok")}, {S("gtok")}, 2
              s_add_u32 {S("gtok")}, {S("gtok")}, {S("pq")}
              s_lshl_b32 {S("gtok")}, {S("gtok")}, 2
              s_add_u32 {S("gtok")}, {S("gtok")}, {S("pl")}
              s_lshl_b32 {S("gtok")}, {S("gtok")}, 1
              s_add_u32 {S("gtok")}, {S("gtok")}, {S("ch")}
              s_lshl_b32 {S("gtok")}, {S("gtok")}, 1
              s_lshl_b32 {S("st0")}, {S("gtok")}, 10
              v_and_b32 {t0}, 0x1f0, {V("l16")}
              v_lshrrev_b32 {t1}, 5, {L}
              v_lshl_add_u32 {t1}, {t1}, 10, {t0}
              s_getpc_b64 s[{S_WD}:{S_WD + 1}]''')
        e(label(f'L{typ}_pc'))
        e(f'''s_sub_u32 s{S_WD}, s{S_WD}, L{typ}_pc-{KNAME}
              s_subb_u32 s{S_WD + 1}, s{S_WD + 1}, 0
              s_lshr_b32 {S("tmp")}, s2, 3
              s_mov_b32 s{S_WD + 2}, L_code_end-{KNAME}
              s_mov_b32 s{S_WD + 3}, 0x20000
              s_lshl_b32 {S("tmp")}, {S("tmp")}, 11
              v_lshlrev_b32 {t2}, 3, v0
              buffer_load_dword {V("dummy")}, {t2}, {sr(S_WD, 4)}, {S("tmp")} offen
              buffer_load_dwordx4 {V("gx", 0, 4)}, {t1}, {sr(S_X, 4)}, {S("st0")} offen
              buffer_load_dwordx4 {V("gx", 4, 4)}, {t1}, {sr(S_X, 4)}, {S("st0")} offen offset:512
              buffer_load_dwordx4 {V("gw", 0, 4)}, {t0}, {sr(S_GW, 4)}, 0 offen
              buffer_load_dwordx4 {V("gw", 4, 4)}, {t0}, {sr(S_GW, 4)}, 0 offen offset:512''')
        self.setup_late()
        e(self.stamp())
        e(bars[0])
        if isA:
            e(self.raw(f'''s_or_b32 {S("tmp")}, s2, {S("w")}
                           s_cbranch_scc1 LA_nogo
                           v_mov_b32 {V("fl")}, 1
                           buffer_store_dword {V("fl")}, {V("one")}, {sr(S_DBG, 4)}, 0 offen sc1
                           LA_nogo:'''))
        for x in pre_reads:
            e(x)
        e(self.stamp())

        Q = self.Q
        g = V('g')
        Q(f'v_mov_b32 {g}, 0', 8)
        for i in range(8):
            Q(f'v_dot2_f32_bf16 {g}, {V("gx", i)}, {V("gw", i)}, {g}', 8)
        for k in (8, 4, 2, 1):
            Q(f'v_add_f32_dpp {g}, {g}, {g} row_ror:{k} row_mask:0xf bank_mask:0xf', 10)
        Q(f'''v_mov_b32 {t0}, {g}
              v_permlane16_swap_b32 {g}, {t0}
              v_add_f32 {g}, {g}, {t0}
              v_mul_f32 {g}, {LOG2E ^ 0x80000000:#x}, {g}
              v_exp_f32 {g}, {g}
              v_add_f32 {g}, 1.0, {g}
              v_rcp_f32 {g}, {g}''', 11)
        for i in range(8, 14):
            U[i].erate = 0.5
        G1 = 33
        fd = o['flag_delay']

        def kkexpr(unit_s, add):
            return f'''s_lshl_b32 {S("st0")}, {unit_s}, 1
                       s_add_u32 {S("st0")}, {S("st0")}, {S("ch")}
                       s_add_u32 {S("st0")}, {S("st0")}, {add}
                       s_lshl_b32 {S("st0")}, {S("st0")}, 12
                       s_add_u32 {S("st0")}, {S("st0")}, {S("stb")}'''
        MISC = 8 * SLOT
        if isA:
            sts = self.q_eh(T1, range(4), kkexpr(S('i8'), 0), G1, False)
            sts.append(self.q_gstore(G1))
            n1 = 12
            for i in range(G1, G1 + n1):
                U[i].erate = 1
            self.q_flag(sts, S('hfst'), 1, G1 + n1 + fd)
            self.epi[-1]['dep'] = self.go_check
            U[G1 + n1 + fd].erate = 1
        else:
            KV = [T1(0, 1), T1(1, 1)]
            ZZ = [T1(2, 1), T1(3, 1)]
            for hj in (1, 0):
                for P in range(2):
                    for base, ph in ((T1(hj, 2 * P), True), (T1(hj + 2, 2 * P), False)):
                        if ph:
                            self.q_phi(base, G1)
                            self.q_phi(base + 4, G1)
                        for i in range(4):
                            Q(f'v_cvt_pk_bf16_f32 v{base + i}, v{base + 2 * i}, v{base + 2 * i + 1}', G1)
                for P in range(2):
                    pk, vv = vr(T1(hj, 2 * P), 4), vr(T1(hj + 2, 2 * P), 4)
                    Q(f'v_mfma_f32_16x16x32_bf16 {vr(KV[hj], 4)}, {pk}, {vv}, {"0" if P == 0 else vr(KV[hj], 4)}', G1)
                for P in range(2):
                    pk = vr(T1(hj, 2 * P), 4)
                    Q(f'v_mfma_f32_16x16x32_bf16 {vr(ZZ[hj], 4)}, {pk}, {V("ones", 0, 4)}, {"0" if P == 0 else vr(ZZ[hj], 4)}', G1)
                if hj == 0:
                    continue
                Q(f'''s_lshl_b32 {S("st0")}, {S("w")}, 11
                      s_add_u32 {S("st0")}, {S("st0")}, {MISC}
                      v_add_u32 {V("gx", 0)}, {S("st0")}, {V("l16")}
                      v_xor_b32 {V("gx", 1)}, 0x1000, {V("gx", 0)}''', G1)
                self.kvw = []
                pending_w = (KV[1], ZZ[1])
            w1 = I(f'ds_write_b128 {V("gx", 0)}, {vr(pending_w[0], 4)}')
            w2 = I(f'ds_write_b128 {V("gx", 0)}, {vr(pending_w[1], 4)} offset:1024')
            w1.over = w2.over = (('X', 6), True)
            Q([w1], G1)
            Q([w2], G1)
            n1 = 13
            for i in range(G1, G1 + n1):
                U[i].erate = 1.8
            bk = 12
            assert barat[bk] == G1 + n1
            bars[bk].lgwait = [w1, w2]
            gx = barat[bk]
            R1, R2 = T1(0, 3), T1(1, 3)
            Q(f'''ds_read_b128 {vr(R1, 4)}, {V("gx", 1)}
                  ds_read_b128 {vr(R2, 4)}, {V("gx", 1)} offset:1024
                  s_lshl_b32 {S("st0")}, {S("kvo")}, 4
                  s_add_u32 {S("st0")}, {S("st0")}, {S("r")}
                  s_lshl_b32 {S("tmp")}, {S("st0")}, 6
                  s_lshl_b32 {S("st0")}, {S("st0")}, 10
                  s_add_u32 {S("st0")}, {S("st0")}, {WS_KV}
                  s_add_u32 {S("tmp")}, {S("tmp")}, {WS_Z}''', gx)
            for i in range(4):
                Q(f'v_add_f32 v{KV[0] + i}, v{KV[0] + i}, v{R1 + i}', gx + 1)
            for i in range(4):
                Q(f'v_add_f32 v{ZZ[0] + i}, v{ZZ[0] + i}, v{R2 + i}', gx + 1)
            sts = [Q(f'buffer_store_dwordx4 {vr(KV[0], 4)}, {V("l16")}, {sr(S_WS, 4)}, {S("st0")} offen sc1', gx + 1),
                   Q(f'buffer_store_dwordx4 {vr(ZZ[0], 4)}, {V("zoff")}, {sr(S_WS, 4)}, {S("tmp")} offen sc1', gx + 1)]
            sts.append(self.q_gstore(gx + 1))
            Q(f'''s_lshl_b32 {S("st0")}, {S("kvo")}, 5
                  s_add_u32 {S("st0")}, {S("st0")}, {S("r")}
                  s_lshl_b32 {S("st0")}, {S("st0")}, 2
                  s_add_u32 {S("st0")}, {S("st0")}, {WS_KVF}''', gx + 1)
            for i in range(gx, gx + 3):
                U[i].erate = 1.5
            self.q_flag(sts, S('st0'), 1, gx + 2 + fd)
            self.epi[-1]['dep'] = self.go_check
            U[gx + 2 + fd].erate = 1
        G2 = P3 + n3 // 2
        sts = self.q_eh(T2, range(4), kkexpr(S('i8'), 16 if isA else 32), G2, not isA)
        for i in range(G2, P2):
            U[i].erate = 1.5
        sts2 = sts

        for i in range(P2):
            if i in (32, 64):
                e(self.stamp())
            self.emit_unit(i)
        assert not self.epi, ('epilogue left over', len(self.epi), self.epi[0]['item'][0].text)
        e(self.stamp())
        GP = P2 - 1
        if isA:
            KL = ACC0 + 32
            for r in range(8, 16):
                q = KL + 4 * ((r - 1) % 8)
                for i in range(4):
                    Q(f'v_add_f32 {V("gw", i)}, {V("gw", i)}, v{q + i}', GP, dep=kvl[15])
            for k in (8, 4, 2, 1):
                for i in range(4):
                    Q(f'v_add_f32_dpp {V("gx", i)}, {V("gx", i)}, {V("gx", i)} row_ror:{k} row_mask:0xf bank_mask:0xf', GP)
            Q(f'''v_cvt_pk_bf16_f32 {V("gw", 0)}, {V("gw", 0)}, {V("gw", 1)}
                  v_cvt_pk_bf16_f32 {V("gw", 1)}, {V("gw", 2)}, {V("gw", 3)}
                  v_cvt_pk_bf16_f32 {V("gw", 2)}, {V("gx", 0)}, {V("gx", 1)}
                  v_cvt_pk_bf16_f32 {V("gw", 3)}, {V("gx", 2)}, {V("gx", 3)}
                  s_lshl_b32 {S("st0")}, {S("w")}, 10
                  s_add_u32 {S("st0")}, {S("st0")}, {MISC}
                  v_add_u32 {V("gx", 4)}, {S("st0")}, {V("l16")}
                  v_and_b32 {V("gx", 5)}, 0xfffff7ff, {V("gx", 4)}''', GP)
            w1 = I(f'ds_write_b128 {V("gx", 4)}, {V("gw", 0, 4)}')
            w1.over = (('X', 6), True)
            Q([w1], GP)
            self.q_flag(sts2, S('hfst'), 2, GP)
            for s in range(4):
                for j in range(2):
                    self.q_phi(T3(j, s), GP)
                    b = T3(j, s)
                    Q(f'v_cvt_pk_bf16_f32 v{b}, v{b}, v{b + 1}\nv_cvt_pk_bf16_f32 v{b + 1}, v{b + 2}, v{b + 3}', GP)
            self.block(GP)
            bars[21].lgwait = [w1]
            U[P2].pre.remove(bars[21])
            e(bars[21])
            self.cur = P2
            Q(f'''ds_read_b128 {V("kvf", 0, 4)}, {V("gx", 5)}
                  ds_read_b128 {V("kvf", 4, 4)}, {V("gx", 5)} offset:2048''', P2)
            Q(kkexpr(S('i8'), 56), P2)
            sts = []
            for half in range(2):
                for s in (2 * half, 2 * half + 1):
                    for j in range(2):
                        n = KL + 16 * (s & 1) + 8 * j
                        pq = vr(T3(j, s), 2)
                        Q(f'v_mfma_f32_16x16x16_bf16 {vr(n + 4, 4)}, {V("kvf", 4 * j + 2, 2)}, {pq}, 0', P2)
                        Q(f'v_mfma_f32_16x16x16_bf16 {vr(n, 4)}, {V("kvf", 4 * j, 2)}, {pq}, 0', P2)
                ns = [KL + 16 * (s & 1) + 8 * j for s in (0, 1) for j in range(2)]
                for n in ns:
                    Q(f'v_add_f32 v{n + 4}, {EPS:#x}, v{n + 4}', P2)
                for n in ns:
                    Q(f'v_rcp_f32 v{n + 4}, v{n + 4}', P2)
                for n in ns:
                    for i in range(4):
                        Q(f'v_mul_f32 v{n + i}, v{n + i}, v{n + 4}', P2)
                for s in (2 * half, 2 * half + 1):
                    D = T3(0, s)
                    for i in range(4):
                        n = KL + 16 * (s & 1) + 8 * (i >> 1) + 2 * (i & 1)
                        Q(f'v_cvt_pk_bf16_f32 v{D + i}, v{n}, v{n + 1}', P2)
            for s in range(4):
                sts.append(Q(f'buffer_store_dwordx4 {vr(T3(0, s), 4)}, {V("l16")}, {sr(S_WS, 4)}, {S("st0")} offen offset:{s * 1024} sc1', P2))
            self.block(P2)
        else:
            self.q_flag(sts2, S('hfst'), 2, GP)
            kx = f'''s_add_u32 {S("st0")}, {S("i8")}, 48
                     s_lshl_b32 {S("st0")}, {S("st0")}, 12
                     s_add_u32 {S("st0")}, {S("st0")}, {S("stb")}'''
            sts = self.q_eh(T3, range(2), kx, GP, True)
            self.block(GP)
        e(self.stamp())
        fd2 = o['flag_delay2']
        self.q_flag(sts, S('hfst'), 3, P2 + fd2)
        U[P2 + fd2].erate = 1
        GB = P2 + 12
        gb = I('s_barrier')
        Q([gb], GB, dep=self.t2_check)
        Q(f'''s_lshl_b32 {S("st0")}, {S("r2")}, 8
              s_add_u32 {S("st0")}, {S("st0")}, {WS_G}''', GB)
        for s in range(4):
            Q(f'''v_lshrrev_b32 {t0}, 10, {V("hl", s)}
                  v_lshl_add_u32 {t0}, {t0}, 6, {V("p15")}
                  buffer_load_dword {V("gv", s)}, {t0}, {sr(S_WS, 4)}, {S("st0")} offen sc1''', GB)
        for i in range(GB, GB + 3):
            U[i].erate = 1
        GS = P2 + 29
        for s in range(4):
            Q(f'v_sub_f32 {V("gm", s)}, 1.0, {V("gv", s)}', GS - 1)
        for j in range(4):
            for s in range(4):
                for i in range(4):
                    Q(f'v_mul_f32 v{T2(j, s) + i}, v{T2(j, s) + i}, {V("gm", s)}', GS)
        last = {self.fills[('P', k)]['slot'] for k in (16, 17)}
        RS = [k for k in range(8) if k not in last][:3]
        owner = {}
        for k in range(18):
            owner[self.fills[('P', k)]['slot']] = ('P', k)
        Q(f'v_add_u32 {V("dx", 0)}, {S("m0b")}, {V("l16")}', GS)
        for s in range(1, 4):
            Q(f'''v_add_u32 {V("dgu", s)}, {RS[s - 1] * SLOT}, {V("dx", 0)}
                  v_xor_b32 {V("dx", s)}, {s * 4096}, {V("dgu", s)}''', GS)
        Q(f'''v_and_b32 {t0}, 15, {L}
              v_lshlrev_b32 {t0}, 10, {t0}
              v_bfe_u32 {t1}, {L}, 4, 1
              v_lshl_add_u32 {t0}, {t1}, 5, {t0}
              v_lshrrev_b32 {t1}, 5, {L}
              v_lshl_add_u32 {V("dgu", 0)}, {t1}, 4, {t0}
              s_lshl_b32 {S("st0")}, {S("r2")}, 2
              s_add_u32 {S("st0")}, {S("st0")}, {S("w")}
              s_lshl_b32 {S("st0")}, {S("st0")}, 14
              s_lshl_b32 {S("tmp")}, {S("c")}, 7
              s_add_u32 {S("st0")}, {S("st0")}, {S("tmp")}''', GS)
        for i in range(GS - 1, NU):
            U[i].erate = 1.7
        for i in range(P2, NU):
            left = sum(st['w'] for st in self.stream)
            U[i].quota = left / max(1, NU - o['p2tail'] - i)
            if i - P2 in (8, 28):
                e(self.stamp())
            self.emit_unit(i)
        assert not self.stream
        self.block(NU)
        e(self.stamp())
        ws = []
        for s in (1, 2, 3, 0):
            for j in range(4):
                for i in range(4):
                    e(f'v_fmac_f32 v{T2(j, s) + i}, v{T1(j, s) + i}, {V("gv", s)}')
                if s:
                    x = I(f'ds_write_b128 {V("dgu", s)}, {vr(T2(j, s), 4)} offset:{j * 1024}')
                    x.over = (owner[RS[s - 1]], False)
                    ws.append(x)
                    e(x)
        b = I('s_barrier')
        b.lgwait = ws
        e(b)
        for j in range(4):
            for s in range(1, 4):
                e(f'ds_read_b128 {vr(T1(j, s), 4)}, {V("dx", s)} offset:{j * 1024}')
        for jp in range(2):
            for j in (2 * jp, 2 * jp + 1):
                for i in range(4):
                    e(f'v_add_f32 v{T1(j, 1) + i}, v{T1(j, 1) + i}, v{T2(j, 0) + i}')
                for i in range(4):
                    e(f'v_add_f32 v{T1(j, 2) + i}, v{T1(j, 2) + i}, v{T1(j, 3) + i}')
                for i in range(4):
                    e(f'v_add_f32 v{T1(j, 1) + i}, v{T1(j, 1) + i}, v{T1(j, 2) + i}')
            D = T1(2 * jp, 0)
            for i in range(4):
                n = T1(2 * jp + (i >> 1), 1) + 2 * (i & 1)
                e(f'v_cvt_pk_bf16_f32 v{D + i}, v{n}, v{n + 1}')
            e(f'v_permlane16_swap_b32 v{D}, v{D + 2}\nv_permlane16_swap_b32 v{D + 1}, v{D + 3}')
            e(f'buffer_store_dwordx4 {vr(D, 4)}, {V("dgu", 0)}, {sr(S_OUT, 4)}, {S("st0")} offen offset:{jp * 64} {o["out_flags"]}')
        if o['diag']:
            e(self.raw('s_waitcnt vmcnt(0)'))
            e(self.stamp())
            e(self.raw('s_memrealtime s[26:27]\ns_waitcnt lgkmcnt(0)'))
            d = V('kvf', 7) if not isA else V('ones', 3)
            for k in range(self.nstamp):
                e(f's_sub_u32 s{4 + 2 * k}, s{4 + 2 * k}, s100\nv_writelane_b32 {d}, s{4 + 2 * k}, {k + 2}')
            e(f'''v_writelane_b32 {d}, s26, 1
                  s_lshl_b32 {S("st0")}, s2, 2
                  s_add_u32 {S("st0")}, {S("st0")}, {S("w")}
                  s_lshl_b32 {S("st0")}, {S("st0")}, 6
                  s_add_u32 {S("st0")}, {S("st0")}, {WS_DIAG}
                  v_mov_b32 {t1}, {BIG:#x}
                  v_cmp_gt_u32 vcc, 16, {L}
                  v_cndmask_b32 {t0}, {t1}, {V("p15")}, vcc
                  buffer_store_dword {d}, {t0}, {sr(S_WS, 4)}, {S("st0")} offen''')
        e(self.raw('s_endpgm'))


HEADER = open(os.path.join(os.path.dirname(os.path.abspath(__file__)), 'header.txt')).read()


def generate(**kw):
    o = dict(DEFAULTS)
    o.update(kw)
    lines = []
    a = Gen('A', o)
    a.common_head()
    nhead = len(a.p)
    a.build()
    b = Gen('B', o)
    b.build()
    st = {}
    la = finalize(a.p, st)
    sa = dict(st, forced=a.forced)
    lb = finalize(b.p, st)
    sb = dict(st, forced=b.forced)
    txt = HEADER
    txt += '; @launch grid=(256,1,1) block=(256,1,1) lds=163840\n'
    txt += f'''.amdgcn_target "amdgcn-amd-amdhsa--gfx950"
.text
.globl {KNAME}
.p2align 8
.type {KNAME},@function
{KNAME}:
'''
    body = la + a.slow + lb + b.slow + ['L_end:', 's_endpgm', 'L_code_end:']
    txt += '\n'.join(('' if l.endswith(':') else '    ') + l for l in body) + '\n'
    txt += f'''.section .rodata,"a"
.p2align 6
.amdhsa_kernel {KNAME}
  .amdhsa_next_free_vgpr 512
  .amdhsa_next_free_sgpr 102
  .amdhsa_accum_offset 256
  .amdhsa_group_segment_fixed_size 0
  .amdhsa_kernarg_size 88
  .amdhsa_user_sgpr_count 2
  .amdhsa_user_sgpr_kernarg_segment_ptr 1
  .amdhsa_system_sgpr_workgroup_id_x 1
.end_amdhsa_kernel
'''
    return txt, (sa, sb)


if __name__ == '__main__':
    import ast
    kw = {}
    out = 'gated_mix__linear_attn_block__glu_gated_reglu__prompt.s'
    for a in sys.argv[1:]:
        k, _, v = a.partition('=')
        if k == 'out':
            out = v
        else:
            try:
                kw[k] = ast.literal_eval(v)
            except Exception:
                kw[k] = v
    txt, st = generate(**kw)
    open(out, 'w').write(txt)
    print(out, st)
```
